```python
import torch

def _softmax(x, axis=-1):
    return torch.softmax(x, dim=axis)
def _gelu(x):
    return torch.nn.functional.gelu(x, approximate="tanh")
def _silu(x):
    return torch.nn.functional.silu(x)
def _sigmoid(x):
    return torch.sigmoid(x)
def _layernorm(x, axis=-1, eps=1e-5):
    m = x.mean(dim=axis, keepdim=True)
    v = x.var(dim=axis, keepdim=True, unbiased=False)
    return (x - m) / torch.sqrt(v + eps)
def _scatter_add(tgt, idx, src, axis=0):
    return tgt.clone().index_add_(axis, idx, src)
def _segment_sum(src, seg, n):
    out = torch.zeros((n,) + src.shape[1:], dtype=src.dtype)
    return out.index_add_(0, seg, src)
def _pad(x, pw):
    flat = tuple(v for pair in reversed(pw) for v in pair)
    return torch.nn.functional.pad(x, flat)

kernel_name = 'standalone__standard_2d_1d_3d_conv__vision'

def setup_inputs():

    _w = (lambda a: (lambda t: t.to(torch.bfloat16) if t.is_floating_point() else t)(torch.as_tensor(a)))
    H = W = 384
    C = 192
    K = 1
    return {
        "x": _w((lambda *s: torch.randn(*s, dtype=torch.bfloat16) * 0.05)(1, H, W, C)),
        "w": _w((lambda *s: torch.randn(*s, dtype=torch.bfloat16) * 0.05)(K, K, C, C)),
        "b": _w((lambda *s: torch.randn(*s, dtype=torch.bfloat16) * 0.05)(C)),
    }

def reference(x, w, b):
    B, H, W, Cin = x.shape
    K = w.shape[0]
    pl = (K - 1) // 2
    pr = K // 2
    xp = _pad(x, ((0, 0), (pl, pr), (pl, pr), (0, 0)))
    out = sum(
        torch.einsum('bhwc,cd->bhwd', xp[:, i:i+H, j:j+W, :], w[i, j])
        for i in range(K) for j in range(K)
    )
    return out + b[None, None, None, :]
```

```python
import sys
NAME = "standalone__standard_2d_1d_3d_conv__vision"

def gen(opts):
    LD_FLAGS = opts.get("ldflags", "")
    ST_FLAGS = opts.get("stflags", "")
    INTERLEAVE = opts.get("interleave", 1)
    DOUBLE_ROUND = opts.get("dround", 1)
    o = []
    def e(s=""):
        o.append(s)
    XB = 56623104
    e("; @launch grid=(256,1,1) block=(256,1,1) lds=147456")
    e('.amdgcn_target "amdgcn-amd-amdhsa--gfx950"')
    e(".text")
    e(f".globl {NAME}_kernel")
    e(".p2align 8")
    e(f".type {NAME}_kernel,@function")
    e(f"{NAME}_kernel:")
    e("  s_cmp_ge_u32 s2, 256")
    e("  s_cbranch_scc1 L_end")
    e("  s_load_dwordx8 s[4:11], s[0:1], 0")
    e("  v_lshrrev_b32 v1, 6, v0")
    e("  v_and_b32 v0, 63, v0            ; lane")
    e("  v_readfirstlane_b32 s28, v1")
    e("  s_mov_b32 s29, 0xAAAAAAAB")
    for i in range(6):
        r = 1 + i
        e(f"  v_add_u32 v40, {64*i}, v0")
        e(f"  v_mul_hi_u32 v41, v40, s29")
        e(f"  v_lshrrev_b32 v41, 4, v41        ; m = u/24")
        e(f"  v_mul_u32_u24 v42, 24, v41")
        e(f"  v_sub_u32 v42, v40, v42          ; c'")
        e(f"  v_bfe_u32 v43, v41, 1, 3         ; f(m)")
        e(f"  v_xor_b32 v42, v42, v43")
        e(f"  v_mul_u32_u24 v41, 24, v41")
        e(f"  v_add_u32 v42, v42, v41")
        e(f"  v_lshlrev_b32 v42, 4, v42")
        imm = 1024*i if i < 4 else 1024*(i-4)
        e(f"  v_subrev_u32 v{r}, {imm}, v42")
    e("  v_and_b32 v44, 15, v0")
    e("  v_lshrrev_b32 v45, 4, v0")
    e("  v_bfe_u32 v43, v44, 1, 3")
    e("  v_xor_b32 v43, v43, v45")
    e("  v_lshlrev_b32 v43, 4, v43")
    e("  v_mul_u32_u24 v42, 384, v44")
    e("  v_add_u32 v7, v42, v43")
    e("  v_xor_b32 v43, 64, v43")
    e("  v_add_u32 v8, v42, v43")
    e("  v_mul_u32_u24 v42, 1536, v45")
    e("  v_lshl_add_u32 v11, v44, 4, v42")
    e("  v_lshl_add_u32 v12, v44, 3, v42")
    e("  v_add_u32 v12, 256, v12")
    e("  v_mul_u32_u24 v42, 3072, v45")
    e("  v_lshl_add_u32 v46, v44, 4, v42")
    e("  v_lshl_add_u32 v47, v44, 3, v42")
    e("  v_add_u32 v47, 256, v47")
    e("  v_lshlrev_b32 v48, 4, v44")
    e("  v_lshlrev_b32 v49, 3, v44")
    e("  v_lshlrev_b32 v50, 4, v0")
    e("  s_lshl_b32 s30, s2, 2")
    e("  s_add_u32 s30, s30, s28")
    if INTERLEAVE:
        e("  s_mul_i32 s31, s30, 6144")
        TSTEP = 1024*6144
    else:
        e("  s_mul_i32 s31, s30, 55296")
        TSTEP = 6144
    e("  s_mul_i32 s32, s28, 18432")
    e("  s_mov_b32 s33, 0x05040100")
    e("  s_mov_b32 s34, 0x07060302")
    e("  s_waitcnt lgkmcnt(0)")
    e("  s_mov_b32 s12, s4")
    e("  s_and_b32 s13, s5, 0xffff")
    e(f"  s_mov_b32 s14, {XB}")
    e("  s_mov_b32 s15, 0x00020000")
    e("  s_mov_b32 s16, s6")
    e("  s_and_b32 s17, s7, 0xffff")
    e("  s_mov_b32 s18, 73728")
    e("  s_mov_b32 s19, 0x00020000")
    e("  s_mov_b32 s20, s8")
    e("  s_and_b32 s21, s9, 0xffff")
    e("  s_mov_b32 s22, 384")
    e("  s_mov_b32 s23, 0x00020000")
    e("  s_mov_b32 s24, s10")
    e("  s_and_b32 s25, s11, 0xffff")
    e(f"  s_mov_b32 s26, {XB}")
    e("  s_mov_b32 s27, 0x00020000")

    def dma_tile(s_goff, s_lds):
        e(f"  s_mov_b32 m0, {s_lds}")
        e(f"  s_add_u32 s40, {s_lds}, 4096")
        for i in range(4):
            off = f" offset:{1024*i}" if i else ""
            e(f"  buffer_load_dwordx4 v{1+i}, s[12:15], {s_goff} offen{off} {LD_FLAGS} lds")
        e(f"  s_mov_b32 m0, s40")
        e(f"  s_nop 0")
        for i in range(4, 6):
            off = f" offset:{1024*(i-4)}" if i-4 else ""
            e(f"  buffer_load_dwordx4 v{1+i}, s[12:15], {s_goff} offen{off} {LD_FLAGS} lds")

    e("  buffer_load_dwordx4 v[28:31], v48, s[20:23], 0 offen")
    e("  buffer_load_dwordx2 v[32:33], v49, s[20:23], 0 offen offset:256")
    e("  s_cmp_eq_u32 s28, 3")
    e("  s_cbranch_scc1 L_noW1")
    e("  s_mul_i32 s35, s28, 24576")
    e("  s_add_u32 s36, s35, 12288")
    LB = 156
    for h in range(2):
        for kk in range(8):
            b = LB + h*48 + kk*4
            e(f"  buffer_load_dwordx4 v[{b}:{b+3}], v46, s[16:19], s{35+h} offen offset:{kk*384}")
        for kk in range(8):
            b = LB + h*48 + 32 + kk*2
            e(f"  buffer_load_dwordx2 v[{b}:{b+1}], v47, s[16:19], s{35+h} offen offset:{kk*384}")
    e("L_noW1:")
    e("  s_mov_b32 s37, s31")
    e("  s_mov_b32 s38, s32")
    for k in range(3):
        dma_tile("s37", "s38")
        e(f"  s_add_u32 s37, s37, {TSTEP}")
        e(f"  s_add_u32 s38, s38, 6144")
    e("  s_waitcnt vmcnt(18)")
    for d in range(6):
        e(f"  v_lshlrev_b32 v{13+2*d}, 16, v{28+d}")
        e(f"  v_and_b32 v{14+2*d}, 0xffff0000, v{28+d}")
    e("  s_cmp_eq_u32 s28, 3")
    e("  s_cbranch_scc1 L_noW2")
    e("  s_mul_i32 s35, s28, 24576")
    e("  s_add_u32 s35, s35, 73728")
    e("  v_add_u32 v51, s35, v50")
    OB = 52
    for h in range(2):
        for t in range(12):
            ob = OB + (h*12 + t)*4
            for ee in range(4):
                if t < 8:
                    d = t//2
                    r0 = LB + h*48 + (2*ee)*4 + d
                    r1 = LB + h*48 + (2*ee+1)*4 + d
                else:
                    d = (t-8)//2
                    r0 = LB + h*48 + 32 + (2*ee)*2 + d
                    r1 = LB + h*48 + 32 + (2*ee+1)*2 + d
                sel = "s33" if t % 2 == 0 else "s34"
                e(f"  v_perm_b32 v{ob+ee}, v{r1}, v{r0}, {sel}")
            e(f"  ds_write_b128 v51, v[{ob}:{ob+3}] offset:{(h*12+t)*1024}")
    e("L_noW2:")
    e("  s_waitcnt lgkmcnt(0)")
    e("  s_barrier")
    e("  v_add_u32 v51, 73728, v50")
    e("  v_add_u32 v52, 73728+36864, v50")
    def wreg(f):
        if f < 64:
            return f"a[{4*f}:{4*f+3}]"
        b = 124 + (f-64)*4
        return f"v[{b}:{b+3}]"
    for f in range(72):
        if f < 36:
            e(f"  ds_read_b128 {wreg(f)}, v51 offset:{f*1024}")
        else:
            e(f"  ds_read_b128 {wreg(f)}, v52 offset:{(f-36)*1024}")
    e("  s_waitcnt lgkmcnt(0)")
    e("  s_barrier")
    e("  s_add_u32 s38, s32, 73728")
    for k in range(3):
        dma_tile("s37", "s38")
        e(f"  s_add_u32 s37, s37, {TSTEP}")
        e(f"  s_add_u32 s38, s38, 6144")
    e("  s_mov_b32 s39, 0                 ; k")
    e("  s_mov_b32 s41, s32")
    e("  s_mov_b32 s42, s31")
    e("  s_mov_b32 s43, 0                 ; k%3")
    e("  s_waitcnt vmcnt(30)")
    e("L_loop:")
    e("  s_waitcnt vmcnt(48)")
    e("  v_add_u32 v9, s41, v7")
    e("  v_add_u32 v10, s41, v8")
    XA = 28
    for s in range(6):
        a = "v9" if s % 2 == 0 else "v10"
        e(f"  ds_read_b128 v[{XA+4*s}:{XA+4*s+3}], {a} offset:{128*(s//2)}")
    e("  s_waitcnt lgkmcnt(0)")
    e("  s_cmp_ge_u32 s39, 3")
    e("  s_cbranch_scc1 L_noload")
    dma_tile("s37", "s41")
    e(f"  s_add_u32 s37, s37, {TSTEP}")
    e("L_noload:")
    AC = 52
    def acc(t): return AC + 4*t
    for grp in ([8,9,10,11],[0,1,2,3],[4,5,6,7]):
        for s in range(6):
            for t in grp:
                c = "0" if s == 0 else f"v[{acc(t)}:{acc(t)+3}]"
                e(f"  v_mfma_f32_16x16x32_bf16 v[{acc(t)}:{acc(t)+3}], v[{XA+4*s}:{XA+4*s+3}], {wreg(s*12+t)}, {c}")
    e("  s_nop 7")
    PK = 100
    for t in range(12):
        for r in range(4):
            a = acc(t)+r
            if DOUBLE_ROUND:
                e(f"  v_cvt_pk_bf16_f32 v{a}, 0, v{a}")
            e(f"  v_add_f32 v{a}, v{a}, v{13+t}")
    for r in range(4):
        for p in range(6):
            e(f"  v_cvt_pk_bf16_f32 v{PK+6*r+p}, v{acc(2*p)+r}, v{acc(2*p+1)+r}")
    for r in range(4):
        off = f" offset:{384*r}" if r else ""
        e(f"  buffer_store_dwordx4 v[{PK+6*r}:{PK+6*r+3}], v11, s[24:27], s42 offen{off} {ST_FLAGS}")
        e(f"  buffer_store_dwordx2 v[{PK+6*r+4}:{PK+6*r+5}], v12, s[24:27], s42 offen{off} {ST_FLAGS}")
    e(f"  s_add_u32 s42, s42, {TSTEP}")
    e("  s_add_u32 s39, s39, 1")
    e("  s_add_u32 s41, s41, 6144")
    e("  s_add_u32 s43, s43, 1")
    e("  s_cmp_lg_u32 s43, 3")
    e("  s_cbranch_scc1 L_noswap")
    e("  s_mov_b32 s43, 0")
    e("  s_add_u32 s44, s32, 73728")
    e("  s_cmp_eq_u32 s39, 3")
    e("  s_cselect_b32 s41, s44, s32")
    e("L_noswap:")
    e("  s_cmp_ge_u32 s39, 3")
    e("  s_cbranch_scc1 L_chk")
    e("  s_waitcnt vmcnt(46)")
    e("  s_cmp_eq_u32 s39, 2")
    e("  s_cbranch_scc1 L_chk")
    e("  s_waitcnt vmcnt(38)")
    e("L_chk:")
    e("  s_cmp_lt_u32 s39, 9")
    e("  s_cbranch_scc1 L_loop")
    e("L_end:")
    e("  s_endpgm")
    e('.section .rodata,"a"')
    e(".p2align 6")
    e(f".amdhsa_kernel {NAME}_kernel")
    e("  .amdhsa_next_free_vgpr 512")
    e("  .amdhsa_next_free_sgpr 64")
    e("  .amdhsa_accum_offset 256")
    e("  .amdhsa_group_segment_fixed_size 0")
    e("  .amdhsa_kernarg_size 48")
    e("  .amdhsa_user_sgpr_count 2")
    e("  .amdhsa_user_sgpr_kernarg_segment_ptr 1")
    e("  .amdhsa_system_sgpr_workgroup_id_x 1")
    e("  .amdhsa_float_denorm_mode_32 3")
    e("  .amdhsa_float_denorm_mode_16_64 3")
    e(".end_amdhsa_kernel")
    return "\n".join(o) + "\n"

if __name__ == "__main__":
    out = sys.argv[1]
    opts = {}
    for a in sys.argv[2:]:
        k, v = a.split("=", 1)
        try: v = int(v)
        except ValueError: pass
        opts[k] = v
    open(out, "w").write(gen(opts))
```

```python
import sys
NAME = "standalone__standard_2d_1d_3d_conv__vision"

def gen(opts):
    LD_FLAGS = opts.get("ldflags", "")
    ST_FLAGS = opts.get("stflags", "")
    INTERLEAVE = opts.get("interleave", 1)
    DOUBLE_ROUND = opts.get("dround", 1)
    STAMPS = opts.get("stamps", 0)
    o = []
    def e(s=""):
        o.append(s)
    nst = [0]
    def stamp():
        if STAMPS:
            i = nst[0]; nst[0] += 1
            e(f"  s_memtime s[{60+2*i}:{61+2*i}]")
    XB = 56623104
    e("; @launch grid=(256,1,1) block=(256,1,1) lds=147456")
    e('.amdgcn_target "amdgcn-amd-amdhsa--gfx950"')
    e(".text")
    e(f".globl {NAME}_kernel")
    e(".p2align 8")
    e(f".type {NAME}_kernel,@function")
    e(f"{NAME}_kernel:")
    e("  s_cmp_ge_u32 s2, 256")
    e("  s_cbranch_scc1 L_end")
    e("  s_load_dwordx8 s[4:11], s[0:1], 0")
    if STAMPS:
        e("  s_load_dwordx2 s[46:47], s[0:1], 32")
        e("  s_memrealtime s[56:57]")
    stamp()
    e("  v_lshrrev_b32 v1, 6, v0")
    e("  v_and_b32 v0, 63, v0            ; lane")
    e("  v_readfirstlane_b32 s28, v1")
    e("  s_mov_b32 s29, 0xAAAAAAAB")
    for i in range(6):
        r = 1 + i
        e(f"  v_add_u32 v40, {64*i}, v0")
        e(f"  v_mul_hi_u32 v41, v40, s29")
        e(f"  v_lshrrev_b32 v41, 4, v41        ; m = u/24")
        e(f"  v_mul_u32_u24 v42, 24, v41")
        e(f"  v_sub_u32 v42, v40, v42          ; c'")
        e(f"  v_bfe_u32 v43, v41, 1, 3         ; f(m)")
        e(f"  v_xor_b32 v42, v42, v43")
        e(f"  v_mul_u32_u24 v41, 24, v41")
        e(f"  v_add_u32 v42, v42, v41")
        e(f"  v_lshlrev_b32 v42, 4, v42")
        imm = 1024*i if i < 4 else 1024*(i-4)
        e(f"  v_subrev_u32 v{r}, {imm}, v42")
    e("  v_and_b32 v44, 15, v0")
    e("  v_lshrrev_b32 v45, 4, v0")
    e("  v_bfe_u32 v43, v44, 1, 3")
    e("  v_xor_b32 v43, v43, v45")
    e("  v_lshlrev_b32 v43, 4, v43")
    e("  v_mul_u32_u24 v42, 384, v44")
    e("  v_add_u32 v7, v42, v43")
    e("  v_xor_b32 v43, 64, v43")
    e("  v_add_u32 v8, v42, v43")
    e("  v_mul_u32_u24 v42, 1536, v45")
    e("  v_lshl_add_u32 v11, v44, 4, v42")
    e("  v_lshl_add_u32 v12, v44, 3, v42")
    e("  v_add_u32 v12, 256, v12")
    e("  v_mul_u32_u24 v42, 3072, v45")
    e("  v_lshl_add_u32 v46, v44, 4, v42")
    e("  v_lshl_add_u32 v47, v44, 3, v42")
    e("  v_add_u32 v47, 256, v47")
    e("  v_lshlrev_b32 v48, 4, v44")
    e("  v_lshlrev_b32 v49, 3, v44")
    e("  v_lshlrev_b32 v50, 4, v0")
    e("  s_lshl_b32 s30, s2, 2")
    e("  s_add_u32 s30, s30, s28")
    if INTERLEAVE:
        e("  s_mul_i32 s31, s30, 6144")
        TSTEP = 1024*6144
    else:
        e("  s_mul_i32 s31, s30, 55296")
        TSTEP = 6144
    e("  s_mul_i32 s32, s28, 18432")
    e("  s_mov_b32 s33, 0x05040100")
    e("  s_mov_b32 s34, 0x07060302")
    e("  s_waitcnt lgkmcnt(0)")
    stamp()
    e("  s_mov_b32 s12, s4")
    e("  s_and_b32 s13, s5, 0xffff")
    e(f"  s_mov_b32 s14, {XB}")
    e("  s_mov_b32 s15, 0x00020000")
    e("  s_mov_b32 s16, s6")
    e("  s_and_b32 s17, s7, 0xffff")
    e("  s_mov_b32 s18, 73728")
    e("  s_mov_b32 s19, 0x00020000")
    e("  s_mov_b32 s20, s8")
    e("  s_and_b32 s21, s9, 0xffff")
    e("  s_mov_b32 s22, 384")
    e("  s_mov_b32 s23, 0x00020000")
    e("  s_mov_b32 s24, s10")
    e("  s_and_b32 s25, s11, 0xffff")
    e(f"  s_mov_b32 s26, {XB}")
    e("  s_mov_b32 s27, 0x00020000")

    def dma_tile(s_goff, s_lds):
        e(f"  s_mov_b32 m0, {s_lds}")
        e(f"  s_add_u32 s40, {s_lds}, 4096")
        for i in range(4):
            off = f" offset:{1024*i}" if i else ""
            e(f"  buffer_load_dwordx4 v{1+i}, s[12:15], {s_goff} offen{off} {LD_FLAGS} lds")
        e(f"  s_mov_b32 m0, s40")
        e(f"  s_nop 0")
        for i in range(4, 6):
            off = f" offset:{1024*(i-4)}" if i-4 else ""
            e(f"  buffer_load_dwordx4 v{1+i}, s[12:15], {s_goff} offen{off} {LD_FLAGS} lds")

    e("  buffer_load_dwordx4 v[28:31], v48, s[20:23], 0 offen")
    e("  buffer_load_dwordx2 v[32:33], v49, s[20:23], 0 offen offset:256")
    e("  s_cmp_eq_u32 s28, 3")
    e("  s_cbranch_scc1 L_noW1")
    e("  s_mul_i32 s35, s28, 24576")
    e("  s_add_u32 s36, s35, 12288")
    LB = 156
    for h in range(2):
        for kk in range(8):
            b = LB + h*48 + kk*4
            e(f"  buffer_load_dwordx4 v[{b}:{b+3}], v46, s[16:19], s{35+h} offen offset:{kk*384}")
        for kk in range(8):
            b = LB + h*48 + 32 + kk*2
            e(f"  buffer_load_dwordx2 v[{b}:{b+1}], v47, s[16:19], s{35+h} offen offset:{kk*384}")
    e("L_noW1:")
    e("  s_mov_b32 s37, s31")
    e("  s_mov_b32 s38, s32")
    for k in range(3):
        dma_tile("s37", "s38")
        e(f"  s_add_u32 s37, s37, {TSTEP}")
        e(f"  s_add_u32 s38, s38, 6144")
    stamp()
    e("  s_waitcnt vmcnt(18)")
    stamp()
    for d in range(6):
        e(f"  v_lshlrev_b32 v{13+2*d}, 16, v{28+d}")
        e(f"  v_and_b32 v{14+2*d}, 0xffff0000, v{28+d}")
    e("  s_cmp_eq_u32 s28, 3")
    e("  s_cbranch_scc1 L_noW2")
    e("  s_mul_i32 s35, s28, 24576")
    e("  s_add_u32 s35, s35, 73728")
    e("  v_add_u32 v51, s35, v50")
    OB = 52
    for h in range(2):
        for t in range(12):
            ob = OB + (h*12 + t)*4
            for ee in range(4):
                if t < 8:
                    d = t//2
                    r0 = LB + h*48 + (2*ee)*4 + d
                    r1 = LB + h*48 + (2*ee+1)*4 + d
                else:
                    d = (t-8)//2
                    r0 = LB + h*48 + 32 + (2*ee)*2 + d
                    r1 = LB + h*48 + 32 + (2*ee+1)*2 + d
                sel = "s33" if t % 2 == 0 else "s34"
                e(f"  v_perm_b32 v{ob+ee}, v{r1}, v{r0}, {sel}")
            e(f"  ds_write_b128 v51, v[{ob}:{ob+3}] offset:{(h*12+t)*1024}")
    e("L_noW2:")
    e("  s_waitcnt lgkmcnt(0)")
    e("  s_barrier")
    stamp()
    e("  v_add_u32 v51, 73728, v50")
    e("  v_add_u32 v52, 73728+36864, v50")
    def wreg(f):
        if f < 64:
            return f"a[{4*f}:{4*f+3}]"
        b = 124 + (f-64)*4
        return f"v[{b}:{b+3}]"
    for f in range(72):
        if f < 36:
            e(f"  ds_read_b128 {wreg(f)}, v51 offset:{f*1024}")
        else:
            e(f"  ds_read_b128 {wreg(f)}, v52 offset:{(f-36)*1024}")
    e("  s_waitcnt lgkmcnt(0)")
    e("  s_barrier")
    stamp()
    e("  s_add_u32 s38, s32, 73728")
    for k in range(3):
        dma_tile("s37", "s38")
        e(f"  s_add_u32 s37, s37, {TSTEP}")
        e(f"  s_add_u32 s38, s38, 6144")
    e("  s_mov_b32 s39, 0                 ; k")
    e("  s_mov_b32 s41, s32")
    e("  s_mov_b32 s42, s31")
    e("  s_mov_b32 s43, 0                 ; k%3")
    e("  s_waitcnt vmcnt(30)")
    stamp()
    e("L_loop:")
    e("  s_waitcnt vmcnt(48)")
    e("  v_add_u32 v9, s41, v7")
    e("  v_add_u32 v10, s41, v8")
    XA = 28
    for s in range(6):
        a = "v9" if s % 2 == 0 else "v10"
        e(f"  ds_read_b128 v[{XA+4*s}:{XA+4*s+3}], {a} offset:{128*(s//2)}")
    e("  s_waitcnt lgkmcnt(0)")
    e("  s_cmp_ge_u32 s39, 3")
    e("  s_cbranch_scc1 L_noload")
    dma_tile("s37", "s41")
    e(f"  s_add_u32 s37, s37, {TSTEP}")
    e("L_noload:")
    AC = 52
    def acc(t): return AC + 4*t
    for grp in ([8,9,10,11],[0,1,2,3],[4,5,6,7]):
        for s in range(6):
            for t in grp:
                c = "0" if s == 0 else f"v[{acc(t)}:{acc(t)+3}]"
                e(f"  v_mfma_f32_16x16x32_bf16 v[{acc(t)}:{acc(t)+3}], v[{XA+4*s}:{XA+4*s+3}], {wreg(s*12+t)}, {c}")
    e("  s_nop 7")
    PK = 100
    for t in range(12):
        for r in range(4):
            a = acc(t)+r
            if DOUBLE_ROUND:
                e(f"  v_cvt_pk_bf16_f32 v{a}, 0, v{a}")
            e(f"  v_add_f32 v{a}, v{a}, v{13+t}")
    for r in range(4):
        for p in range(6):
            e(f"  v_cvt_pk_bf16_f32 v{PK+6*r+p}, v{acc(2*p)+r}, v{acc(2*p+1)+r}")
    for r in range(4):
        off = f" offset:{384*r}" if r else ""
        e(f"  buffer_store_dwordx4 v[{PK+6*r}:{PK+6*r+3}], v11, s[24:27], s42 offen{off} {ST_FLAGS}")
        e(f"  buffer_store_dwordx2 v[{PK+6*r+4}:{PK+6*r+5}], v12, s[24:27], s42 offen{off} {ST_FLAGS}")
    e(f"  s_add_u32 s42, s42, {TSTEP}")
    e("  s_add_u32 s39, s39, 1")
    e("  s_add_u32 s41, s41, 6144")
    e("  s_add_u32 s43, s43, 1")
    e("  s_cmp_lg_u32 s43, 3")
    e("  s_cbranch_scc1 L_noswap")
    e("  s_mov_b32 s43, 0")
    e("  s_add_u32 s44, s32, 73728")
    e("  s_cmp_eq_u32 s39, 3")
    e("  s_cselect_b32 s41, s44, s32")
    e("L_noswap:")
    e("  s_cmp_ge_u32 s39, 3")
    e("  s_cbranch_scc1 L_chk")
    e("  s_waitcnt vmcnt(46)")
    e("  s_cmp_eq_u32 s39, 2")
    e("  s_cbranch_scc1 L_chk")
    e("  s_waitcnt vmcnt(38)")
    e("L_chk:")
    if STAMPS:
        for kk in (1, 3, 6):
            e(f"  s_cmp_lg_u32 s39, {kk}")
            e(f"  s_cbranch_scc1 L_st{kk}")
            stamp()
            e(f"L_st{kk}:")
    e("  s_cmp_lt_u32 s39, 9")
    e("  s_cbranch_scc1 L_loop")
    if STAMPS:
        stamp()
        e("  s_waitcnt vmcnt(0)")
        stamp()
        e("  s_memrealtime s[58:59]")
        e("  s_waitcnt lgkmcnt(0)")
        e("  s_mov_b32 s48, s46")
        e("  s_and_b32 s49, s47, 0xffff")
        e("  s_mov_b32 s50, 256")
        e("  s_mov_b32 s51, 0x00020000")
        e("  v_mov_b32 v1, 0")
        e("  s_not_b32 s56, s56")
        e("  v_mov_b32 v2, s56")
        e("  v_mov_b32 v3, s58")
        e("  s_mov_b64 exec, 1")
        e("  buffer_atomic_umax v2, v1, s[48:51], 0 offen offset:60")
        e("  buffer_atomic_umax v3, v1, s[48:51], 0 offen offset:56")
        e(f"  s_cmp_lg_u32 s30, {STAMPS-1}")
        e("  s_cbranch_scc1 L_end")
        for i in range(1, nst[0]):
            e(f"  s_sub_u32 s52, s{60+2*i}, s60")
            e("  v_mov_b32 v2, s52")
            e(f"  buffer_store_dword v2, v1, s[48:51], 0 offen offset:{4*(i-1)}")
    e("L_end:")
    e("  s_endpgm")
    e('.section .rodata,"a"')
    e(".p2align 6")
    e(f".amdhsa_kernel {NAME}_kernel")
    e("  .amdhsa_next_free_vgpr 512")
    e("  .amdhsa_next_free_sgpr 96")
    e("  .amdhsa_accum_offset 256")
    e("  .amdhsa_group_segment_fixed_size 0")
    e("  .amdhsa_kernarg_size 48")
    e("  .amdhsa_user_sgpr_count 2")
    e("  .amdhsa_user_sgpr_kernarg_segment_ptr 1")
    e("  .amdhsa_system_sgpr_workgroup_id_x 1")
    e("  .amdhsa_float_denorm_mode_32 3")
    e("  .amdhsa_float_denorm_mode_16_64 3")
    e(".end_amdhsa_kernel")
    return "\n".join(o) + "\n"

if __name__ == "__main__":
    out = sys.argv[1]
    opts = {}
    for a in sys.argv[2:]:
        k, v = a.split("=", 1)
        try: v = int(v)
        except ValueError: pass
        opts[k] = v
    open(out, "w").write(gen(opts))
```

```python
import sys
NAME = "standalone__standard_2d_1d_3d_conv__vision"

def gen(opts):
    LD_FLAGS = opts.get("ldflags", "nt")
    ST_FLAGS = opts.get("stflags", "")
    INTERLEAVE = opts.get("interleave", 1)
    STAMPS = opts.get("stamps", 0)
    VPG = opts.get("vpg", 2)
    o = []
    def e(s=""):
        o.append(s)
    nst = [0]
    def stamp():
        if STAMPS:
            i = nst[0]; nst[0] += 1
            e(f"  s_memtime s[{60+2*i}:{61+2*i}]")
    XB = 56623104
    e("; @launch grid=(256,1,1) block=(256,1,1) lds=147456")
    e('.amdgcn_target "amdgcn-amd-amdhsa--gfx950"')
    e(".text")
    e(f".globl {NAME}_kernel")
    e(".p2align 8")
    e(f".type {NAME}_kernel,@function")
    e(f"{NAME}_kernel:")
    e("  s_cmp_ge_u32 s2, 256")
    e("  s_cbranch_scc1 L_end")
    e("  s_load_dwordx8 s[4:11], s[0:1], 0")
    if STAMPS:
        e("  s_load_dwordx2 s[46:47], s[0:1], 40")
        e("  s_memrealtime s[56:57]")
    stamp()
    e("  v_lshrrev_b32 v1, 6, v0")
    e("  v_and_b32 v0, 63, v0            ; lane")
    e("  v_readfirstlane_b32 s28, v1")
    e("  v_and_b32 v54, 15, v0")
    e("  v_lshrrev_b32 v55, 4, v0")
    e("  v_mul_u32_u24 v52, 384, v54")
    e("  v_lshl_add_u32 v9, v55, 4, v52")
    e("  v_mul_u32_u24 v53, 3072, v55")
    e("  v_lshl_add_u32 v56, v54, 4, v53")
    e("  v_lshl_add_u32 v57, v54, 3, v53")
    e("  v_add_u32 v57, 256, v57")
    e("  v_lshlrev_b32 v58, 4, v54")
    e("  v_lshlrev_b32 v59, 3, v54")
    e("  s_lshl_b32 s30, s2, 2")
    e("  s_add_u32 s30, s30, s28")
    if INTERLEAVE:
        e("  s_mul_i32 s31, s30, 6144")
        TSTEP = 1024*6144
    else:
        e("  s_mul_i32 s31, s30, 55296")
        TSTEP = 6144
    e("  s_mul_i32 s32, s28, 18432")
    e("  s_mov_b32 s33, 0x05040100")
    e("  s_mov_b32 s34, 0x07060302")
    e("  s_mul_i32 s35, s28, 24576")
    e("  s_add_u32 s36, s35, 12288")
    e(f"  s_mov_b32 s14, {XB}")
    e("  s_mov_b32 s15, 0x00020000")
    e("  s_mov_b32 s18, 73728")
    e("  s_mov_b32 s19, 0x00020000")
    e("  s_mov_b32 s22, 384")
    e("  s_mov_b32 s23, 0x00020000")
    e(f"  s_mov_b32 s26, {XB}")
    e("  s_mov_b32 s27, 0x00020000")
    e("  s_mov_b32 s29, 0xAAAAAAAB")
    def dma_offsets():
        for i in range(6):
            r = 1 + i
            e(f"  v_add_u32 v60, {64*i}, v0")
            e(f"  v_mul_hi_u32 v61, v60, s29")
            e(f"  v_lshrrev_b32 v61, 4, v61        ; m = u/24")
            e(f"  v_mul_u32_u24 v62, 24, v61")
            e(f"  v_sub_u32 v63, v60, v62          ; c'")
            e(f"  v_bfe_u32 v61, v61, 1, 3         ; f(m)")
            e(f"  v_xor_b32 v63, v63, v61")
            e(f"  v_add_u32 v63, v63, v62")
            imm = 1024*i if i < 4 else 1024*(i-4)
            e(f"  v_lshlrev_b32 v63, 4, v63")
            e(f"  v_subrev_u32 v{r}, {imm}, v63")
    dma_offsets()
    e("  v_bfe_u32 v61, v54, 1, 3")
    e("  v_xor_b32 v61, v61, v55")
    e("  v_lshlrev_b32 v61, 4, v61")
    e("  v_add_u32 v7, v52, v61")
    e("  v_xor_b32 v61, 64, v61")
    e("  v_add_u32 v8, v52, v61")
    e("  v_mul_u32_u24 v53, 1536, v55")
    e("  v_lshl_add_u32 v11, v54, 4, v53")
    e("  v_lshl_add_u32 v12, v54, 3, v53")
    e("  v_add_u32 v12, 256, v12")
    e("  v_lshlrev_b32 v60, 4, v0         ; lane*16")
    e("  s_waitcnt lgkmcnt(0)")
    stamp()
    e("  s_mov_b32 s12, s4")
    e("  s_and_b32 s13, s5, 0xffff")
    e("  s_mov_b32 s16, s6")
    e("  s_and_b32 s17, s7, 0xffff")
    e("  s_mov_b32 s20, s8")
    e("  s_and_b32 s21, s9, 0xffff")
    e("  s_mov_b32 s24, s10")
    e("  s_and_b32 s25, s11, 0xffff")

    def dma_tile(s_goff, s_lds):
        e(f"  s_mov_b32 m0, {s_lds}")
        e(f"  s_add_u32 s40, {s_lds}, 4096")
        for i in range(4):
            off = f" offset:{1024*i}" if i else ""
            e(f"  buffer_load_dwordx4 v{1+i}, s[12:15], {s_goff} offen{off} {LD_FLAGS} lds")
        e(f"  s_mov_b32 m0, s40")
        e(f"  s_nop 0")
        for i in range(4, 6):
            off = f" offset:{1024*(i-4)}" if i-4 else ""
            e(f"  buffer_load_dwordx4 v{1+i}, s[12:15], {s_goff} offen{off} {LD_FLAGS} lds")
    XA = 28
    AC = 64
    PK = 112
    WV = 136
    LB = 160
    OB = 64
    BR = 25
    for s in range(6):
        e(f"  buffer_load_dwordx4 v[{XA+4*s}:{XA+4*s+3}], v9, s[12:15], s31 offen offset:{64*s} {LD_FLAGS}")
    e("  buffer_load_dwordx4 v[20:23], v58, s[20:23], 0 offen")
    e("  buffer_load_dwordx2 v[26:27], v59, s[20:23], 0 offen offset:256")
    e(f"  s_add_u32 s37, s31, {TSTEP}")
    e("  s_mov_b32 s38, s32")
    e("  s_cmp_eq_u32 s28, 3")
    e("  s_cbranch_scc1 L_w3")
    for h in range(2):
        for kk in range(8):
            b = LB + h*48 + kk*4
            e(f"  buffer_load_dwordx4 v[{b}:{b+3}], v56, s[16:19], s{35+h} offen offset:{kk*384}")
        for kk in range(8):
            b = LB + h*48 + 32 + kk*2
            e(f"  buffer_load_dwordx2 v[{b}:{b+1}], v57, s[16:19], s{35+h} offen offset:{kk*384}")
    e("  s_add_u32 s35, s35, 73728")
    e("  v_add_u32 v61, s35, v60")
    def nexttile():
        dma_tile("s37", "s38")
        e(f"  s_add_u32 s37, s37, {TSTEP}")
        e(f"  s_add_u32 s38, s38, 6144")
    def prep(h):
        for t in range(12):
            ob = OB + (h*12 + t)*4
            for ee in range(4):
                if t < 8:
                    d = t//2
                    r0 = LB + h*48 + (2*ee)*4 + d
                    r1 = LB + h*48 + (2*ee+1)*4 + d
                else:
                    d = (t-8)//2
                    r0 = LB + h*48 + 32 + (2*ee)*2 + d
                    r1 = LB + h*48 + 32 + (2*ee+1)*2 + d
                sel = "s33" if t % 2 == 0 else "s34"
                e(f"  v_perm_b32 v{ob+ee}, v{r1}, v{r0}, {sel}")
            e(f"  ds_write_b128 v61, v[{ob}:{ob+3}] offset:{(h*12+t)*1024}")
    nexttile()
    stamp()
    e("  s_waitcnt vmcnt(22)")
    stamp()
    prep(0)
    nexttile()
    e("  s_waitcnt vmcnt(12)")
    prep(1)
    nexttile()
    e("  s_branch L_join")
    e("L_w3:")
    if STAMPS:
        e(f"  s_memtime s[{60+2*2}:{61+2*2}]")
        e(f"  s_memtime s[{60+2*3}:{61+2*3}]")
    for k in range(3):
        nexttile()
    e("L_join:")
    e("  s_waitcnt vmcnt(18)")
    e("  v_lshlrev_b32 v13, 16, v20")
    e("  v_and_b32 v14, 0xffff0000, v20")
    e("  v_lshlrev_b32 v15, 16, v21")
    e("  v_and_b32 v16, 0xffff0000, v21")
    e("  v_lshlrev_b32 v17, 16, v22")
    e("  v_and_b32 v18, 0xffff0000, v22")
    e("  v_lshlrev_b32 v19, 16, v23")
    e("  v_and_b32 v20, 0xffff0000, v23")
    e("  v_lshlrev_b32 v21, 16, v26")
    e("  v_and_b32 v22, 0xffff0000, v26")
    e("  v_lshlrev_b32 v23, 16, v27")
    e("  v_and_b32 v24, 0xffff0000, v27")
    e("  v_add_u32 v61, 73728, v60")
    e("  v_add_u32 v62, 73728+36864, v60")
    e("  s_waitcnt lgkmcnt(0)")
    e("  s_barrier")
    stamp()
    def wreg(f):
        if f < 64:
            return f"a[{4*f}:{4*f+3}]"
        b = WV + (f-64)*4
        return f"v[{b}:{b+3}]"
    for f in range(72):
        if f < 36:
            e(f"  ds_read_b128 {wreg(f)}, v61 offset:{f*1024}")
        else:
            e(f"  ds_read_b128 {wreg(f)}, v62 offset:{(f-36)*1024}")
    e("  s_waitcnt lgkmcnt(0)")
    e("  s_barrier")
    stamp()
    e("  s_add_u32 s38, s32, 73728")
    for k in range(3):
        nexttile()
    e("  s_mov_b32 s39, 0                 ; k")
    e("  s_mov_b32 s41, s32")
    e("  s_mov_b32 s42, s31")
    e("  s_mov_b32 s43, 0                 ; slot%3")
    stamp()
    def acc(t): return AC + 4*t
    pairs = [(8,9),(10,11),(0,1),(2,3),(4,5),(6,7)]
    def pk_reg(r, p):
        return PK + 6*r + p
    def epi(pair):
        t0, t1 = pair
        ins = []
        for t in (t0, t1):
            for r in range(4):
                a = acc(t)+r
                ins.append(f"  v_cvt_pk_bf16_f32 v{a}, 0, v{a}")
        for t in (t0, t1):
            for r in range(4):
                a = acc(t)+r
                ins.append(f"  v_add_f32 v{a}, v{a}, v{13+t}")
        for r in range(4):
            ins.append(f"  v_cvt_pk_bf16_f32 v{pk_reg(r, t0//2)}, v{acc(t0)+r}, v{acc(t1)+r}")
        return ins
    def st2(r):
        off = f" offset:{384*r}" if r else ""
        return f"  buffer_store_dwordx2 v[{pk_reg(r,4)}:{pk_reg(r,5)}], v12, s[24:27], s42 offen{off} {ST_FLAGS}"
    def st4(r):
        off = f" offset:{384*r}" if r else ""
        return f"  buffer_store_dwordx4 v[{pk_reg(r,0)}:{pk_reg(r,3)}], v11, s[24:27], s42 offen{off} {ST_FLAGS}"
    e("L_loop:")
    pos = [0]
    lastw = {}
    queue = []
    def emit(x, w=1):
        e(x); pos[0] += w
    def ready(item):
        t = item[1]
        return t is None or (pos[0] - lastw[t]) > 8
    def drain(n):
        c = 0
        while queue and c < n and ready(queue[0]):
            emit(queue.pop(0)[0]); c += 1
    def epi_q(pair):
        t0, t1 = pair
        q = []
        for t in (t0, t1):
            for r in range(4):
                a_ = acc(t)+r
                q.append((f"  v_cvt_pk_bf16_f32 v{a_}, 0, v{a_}", t))
        for t in (t0, t1):
            for r in range(4):
                a_ = acc(t)+r
                q.append((f"  v_add_f32 v{a_}, v{a_}, v{13+t}", None))
        for r in range(4):
            q.append((f"  v_cvt_pk_bf16_f32 v{pk_reg(r, t0//2)}, v{acc(t0)+r}, v{acc(t1)+r}", None))
        return q
    for pi, pair in enumerate(pairs):
        for s in range(6):
            if pi == 0:
                emit(f"  s_waitcnt lgkmcnt({5-s})")
            for t in pair:
                c = "0" if s == 0 else f"v[{acc(t)}:{acc(t)+3}]"
                lastw[t] = pos[0]
                emit(f"  v_mfma_f32_16x16x32_bf16 v[{acc(t)}:{acc(t)+3}], v[{XA+4*s}:{XA+4*s+3}], {wreg(s*12+t)}, {c}")
                drain(VPG)
        queue += epi_q(pair)
        if pi == 1:
            queue += [(st2(r), None) for r in range(4)]
    while queue:
        if not ready(queue[0]):
            need = 9 - (pos[0] - lastw[queue[0][1]])
            emit(f"  s_nop {need-1}", need)
        emit(queue.pop(0)[0])
    for r in range(4):
        e(st4(r))
    e(f"  s_add_u32 s42, s42, {TSTEP}")
    e("  s_add_u32 s39, s39, 1")
    e("  s_cmp_eq_u32 s39, 9")
    e("  s_cbranch_scc1 L_done")
    e("  s_waitcnt vmcnt(48)")
    e("  s_cmp_ge_u32 s39, 3")
    e("  s_cbranch_scc1 L_w")
    e("  s_waitcnt vmcnt(46)")
    e("  s_cmp_eq_u32 s39, 2")
    e("  s_cbranch_scc1 L_w")
    e("  s_waitcnt vmcnt(38)")
    e("L_w:")
    if STAMPS:
        for kk in (1, 3, 6):
            e(f"  s_cmp_lg_u32 s39, {kk}")
            e(f"  s_cbranch_scc1 L_st{kk}")
            stamp()
            e(f"  s_waitcnt lgkmcnt(0)")
            e(f"L_st{kk}:")
    e("  v_add_u32 v9, s41, v7")
    e("  v_add_u32 v10, s41, v8")
    for s in range(6):
        a = "v9" if s % 2 == 0 else "v10"
        e(f"  ds_read_b128 v[{XA+4*s}:{XA+4*s+3}], {a} offset:{128*(s//2)}")
    e("  s_cmp_ge_u32 s39, 3")
    e("  s_cbranch_scc1 L_noload")
    e("  s_waitcnt lgkmcnt(0)")
    dma_tile("s37", "s41")
    e(f"  s_add_u32 s37, s37, {TSTEP}")
    e("L_noload:")
    e("  s_add_u32 s41, s41, 6144")
    e("  s_add_u32 s43, s43, 1")
    e("  s_cmp_lg_u32 s43, 3")
    e("  s_cbranch_scc1 L_loop")
    e("  s_mov_b32 s43, 0")
    e("  s_add_u32 s44, s32, 73728")
    e("  s_cmp_eq_u32 s39, 3")
    e("  s_cselect_b32 s41, s44, s32")
    e("  s_branch L_loop")
    e("L_done:")
    if STAMPS:
        stamp()
        e("  s_waitcnt vmcnt(0)")
        stamp()
        e("  s_memrealtime s[58:59]")
        e("  s_waitcnt lgkmcnt(0)")
        e("  s_mov_b32 s48, s46")
        e("  s_and_b32 s49, s47, 0xffff")
        e("  s_mov_b32 s50, 65536")
        e("  s_mov_b32 s51, 0x00020000")
        e("  s_lshl_b32 s53, s30, 6")
        e("  v_mov_b32 v1, s53")
        e("  v_mov_b32 v2, s56")
        e("  v_mov_b32 v3, s58")
        e("  s_mov_b64 exec, 1")
        e("  buffer_store_dword v2, v1, s[48:51], 0 offen offset:56")
        e("  buffer_store_dword v3, v1, s[48:51], 0 offen offset:60")
        for i in range(1, nst[0]):
            e(f"  s_sub_u32 s52, s{60+2*i}, s60")
            e("  v_mov_b32 v2, s52")
            e(f"  buffer_store_dword v2, v1, s[48:51], 0 offen offset:{4*(i-1)}")
    e("L_end:")
    e("  s_endpgm")
    e('.section .rodata,"a"')
    e(".p2align 6")
    e(f".amdhsa_kernel {NAME}_kernel")
    e("  .amdhsa_next_free_vgpr 512")
    e("  .amdhsa_next_free_sgpr 96")
    e("  .amdhsa_accum_offset 256")
    e("  .amdhsa_group_segment_fixed_size 0")
    e("  .amdhsa_kernarg_size 48")
    e("  .amdhsa_user_sgpr_count 2")
    e("  .amdhsa_user_sgpr_kernarg_segment_ptr 1")
    e("  .amdhsa_system_sgpr_workgroup_id_x 1")
    e("  .amdhsa_float_denorm_mode_32 3")
    e("  .amdhsa_float_denorm_mode_16_64 3")
    e(".end_amdhsa_kernel")
    return "\n".join(o) + "\n"

if __name__ == "__main__":
    out = sys.argv[1]
    opts = {}
    for a in sys.argv[2:]:
        k, v = a.split("=", 1)
        try: v = int(v)
        except ValueError: v = v.replace("+", " ")
        opts[k] = v
    open(out, "w").write(gen(opts))
```

```python
import sys
NAME = "standalone__standard_2d_1d_3d_conv__vision"

def gen(opts):
    LD_FLAGS = opts.get("ldflags", "nt")
    ST_FLAGS = opts.get("stflags", "")
    INTERLEAVE = opts.get("interleave", 1)
    STAMPS = opts.get("stamps", 0)
    VPG = opts.get("vpg", 2)
    o = []
    def e(s=""):
        o.append(s)
    nst = [0]
    def stamp():
        if STAMPS:
            i = nst[0]; nst[0] += 1
            e(f"  s_memtime s[{60+2*i}:{61+2*i}]")
    XB = 56623104
    e("; @launch grid=(256,1,1) block=(256,1,1) lds=147456")
    e('.amdgcn_target "amdgcn-amd-amdhsa--gfx950"')
    e(".text")
    e(f".globl {NAME}_kernel")
    e(".p2align 8")
    e(f".type {NAME}_kernel,@function")
    e(f"{NAME}_kernel:")
    e("  s_cmp_ge_u32 s2, 256")
    e("  s_cbranch_scc1 L_end")
    e("  s_load_dwordx8 s[4:11], s[0:1], 0")
    if STAMPS:
        e(f"  s_load_dwordx2 s[46:47], s[0:1], {40 if STAMPS == 1 else 32}")
        e("  s_memrealtime s[56:57]")
    stamp()
    e("  v_lshrrev_b32 v1, 6, v0")
    e("  v_and_b32 v0, 63, v0            ; lane")
    e("  v_readfirstlane_b32 s28, v1")
    e("  v_and_b32 v54, 15, v0")
    e("  v_lshrrev_b32 v55, 4, v0")
    e("  v_mul_u32_u24 v52, 384, v54")
    e("  v_lshl_add_u32 v9, v55, 4, v52")
    e("  v_mul_u32_u24 v53, 3072, v55")
    e("  v_lshl_add_u32 v56, v54, 4, v53")
    e("  v_lshl_add_u32 v57, v54, 3, v53")
    e("  v_add_u32 v57, 256, v57")
    e("  v_lshlrev_b32 v58, 4, v54")
    e("  v_lshlrev_b32 v59, 3, v54")
    e("  s_lshl_b32 s30, s2, 2")
    e("  s_add_u32 s30, s30, s28")
    if INTERLEAVE:
        e("  s_mul_i32 s31, s30, 6144")
        TSTEP = 1024*6144
    else:
        e("  s_mul_i32 s31, s30, 55296")
        TSTEP = 6144
    e("  s_mul_i32 s32, s28, 18432")
    e("  s_mov_b32 s33, 0x05040100")
    e("  s_mov_b32 s34, 0x07060302")
    e("  s_mul_i32 s35, s28, 24576")
    e("  s_add_u32 s36, s35, 12288")
    e(f"  s_mov_b32 s14, {XB}")
    e("  s_mov_b32 s15, 0x00020000")
    e("  s_mov_b32 s18, 73728")
    e("  s_mov_b32 s19, 0x00020000")
    e("  s_mov_b32 s22, 384")
    e("  s_mov_b32 s23, 0x00020000")
    e(f"  s_mov_b32 s26, {XB}")
    e("  s_mov_b32 s27, 0x00020000")
    e("  s_mov_b32 s29, 0xAAAAAAAB")
    def dma_offsets():
        for i in range(6):
            r = 1 + i
            e(f"  v_add_u32 v60, {64*i}, v0")
            e(f"  v_mul_hi_u32 v61, v60, s29")
            e(f"  v_lshrrev_b32 v61, 4, v61        ; m = u/24")
            e(f"  v_mul_u32_u24 v62, 24, v61")
            e(f"  v_sub_u32 v63, v60, v62          ; c'")
            e(f"  v_bfe_u32 v61, v61, 1, 3         ; f(m)")
            e(f"  v_xor_b32 v63, v63, v61")
            e(f"  v_add_u32 v63, v63, v62")
            imm = 1024*i if i < 4 else 1024*(i-4)
            e(f"  v_lshlrev_b32 v63, 4, v63")
            e(f"  v_subrev_u32 v{r}, {imm}, v63")
    dma_offsets()
    e("  v_bfe_u32 v61, v54, 1, 3")
    e("  v_xor_b32 v61, v61, v55")
    e("  v_lshlrev_b32 v61, 4, v61")
    e("  v_add_u32 v7, v52, v61")
    e("  v_xor_b32 v61, 64, v61")
    e("  v_add_u32 v8, v52, v61")
    e("  v_mul_u32_u24 v53, 1536, v55")
    e("  v_lshl_add_u32 v11, v54, 4, v53")
    e("  v_lshl_add_u32 v12, v54, 3, v53")
    e("  v_add_u32 v12, 256, v12")
    e("  v_lshlrev_b32 v60, 4, v0         ; lane*16")
    e("  s_waitcnt lgkmcnt(0)")
    stamp()
    e("  s_mov_b32 s12, s4")
    e("  s_and_b32 s13, s5, 0xffff")
    e("  s_mov_b32 s16, s6")
    e("  s_and_b32 s17, s7, 0xffff")
    e("  s_mov_b32 s20, s8")
    e("  s_and_b32 s21, s9, 0xffff")
    e("  s_mov_b32 s24, s10")
    e("  s_and_b32 s25, s11, 0xffff")

    def dma_tile(s_goff, s_lds):
        e(f"  s_mov_b32 m0, {s_lds}")
        e(f"  s_add_u32 s40, {s_lds}, 4096")
        for i in range(4):
            off = f" offset:{1024*i}" if i else ""
            e(f"  buffer_load_dwordx4 v{1+i}, s[12:15], {s_goff} offen{off} {LD_FLAGS} lds")
        e(f"  s_mov_b32 m0, s40")
        e(f"  s_nop 0")
        for i in range(4, 6):
            off = f" offset:{1024*(i-4)}" if i-4 else ""
            e(f"  buffer_load_dwordx4 v{1+i}, s[12:15], {s_goff} offen{off} {LD_FLAGS} lds")
    XA = 28
    AC = 64
    PK = 112
    WV = 136
    LB = 160
    OB = 64
    BR = 25
    for s in range(6):
        e(f"  buffer_load_dwordx4 v[{XA+4*s}:{XA+4*s+3}], v9, s[12:15], s31 offen offset:{64*s} {LD_FLAGS}")
    e("  buffer_load_dwordx4 v[20:23], v58, s[20:23], 0 offen")
    e("  buffer_load_dwordx2 v[26:27], v59, s[20:23], 0 offen offset:256")
    e(f"  s_add_u32 s37, s31, {TSTEP}")
    e("  s_mov_b32 s38, s32")
    e("  s_cmp_eq_u32 s28, 3")
    e("  s_cbranch_scc1 L_w3")
    for h in range(2):
        for kk in range(8):
            b = LB + h*48 + kk*4
            e(f"  buffer_load_dwordx4 v[{b}:{b+3}], v56, s[16:19], s{35+h} offen offset:{kk*384}")
        for kk in range(8):
            b = LB + h*48 + 32 + kk*2
            e(f"  buffer_load_dwordx2 v[{b}:{b+1}], v57, s[16:19], s{35+h} offen offset:{kk*384}")
    e("  s_add_u32 s35, s35, 73728")
    e("  v_add_u32 v61, s35, v60")
    def nexttile():
        dma_tile("s37", "s38")
        e(f"  s_add_u32 s37, s37, {TSTEP}")
        e(f"  s_add_u32 s38, s38, 6144")
    def prep(h):
        for t in range(12):
            ob = OB + (h*12 + t)*4
            for ee in range(4):
                if t < 8:
                    d = t//2
                    r0 = LB + h*48 + (2*ee)*4 + d
                    r1 = LB + h*48 + (2*ee+1)*4 + d
                else:
                    d = (t-8)//2
                    r0 = LB + h*48 + 32 + (2*ee)*2 + d
                    r1 = LB + h*48 + 32 + (2*ee+1)*2 + d
                sel = "s33" if t % 2 == 0 else "s34"
                e(f"  v_perm_b32 v{ob+ee}, v{r1}, v{r0}, {sel}")
            e(f"  ds_write_b128 v61, v[{ob}:{ob+3}] offset:{(h*12+t)*1024}")
    nexttile()
    stamp()
    e("  s_waitcnt vmcnt(22)")
    stamp()
    prep(0)
    nexttile()
    e("  s_waitcnt vmcnt(12)")
    prep(1)
    nexttile()
    e("  s_branch L_join")
    e("L_w3:")
    if STAMPS:
        e(f"  s_memtime s[{60+2*2}:{61+2*2}]")
        e(f"  s_memtime s[{60+2*3}:{61+2*3}]")
    for k in range(3):
        nexttile()
    e("L_join:")
    e("  s_waitcnt vmcnt(18)")
    e("  v_lshlrev_b32 v13, 16, v20")
    e("  v_and_b32 v14, 0xffff0000, v20")
    e("  v_lshlrev_b32 v15, 16, v21")
    e("  v_and_b32 v16, 0xffff0000, v21")
    e("  v_lshlrev_b32 v17, 16, v22")
    e("  v_and_b32 v18, 0xffff0000, v22")
    e("  v_lshlrev_b32 v19, 16, v23")
    e("  v_and_b32 v20, 0xffff0000, v23")
    e("  v_lshlrev_b32 v21, 16, v26")
    e("  v_and_b32 v22, 0xffff0000, v26")
    e("  v_lshlrev_b32 v23, 16, v27")
    e("  v_and_b32 v24, 0xffff0000, v27")
    e("  v_add_u32 v61, 73728, v60")
    e("  v_add_u32 v62, 73728+36864, v60")
    e("  s_waitcnt lgkmcnt(0)")
    e("  s_barrier")
    stamp()
    def wreg(f):
        if f < 64:
            return f"a[{4*f}:{4*f+3}]"
        b = WV + (f-64)*4
        return f"v[{b}:{b+3}]"
    for f in range(72):
        if f < 36:
            e(f"  ds_read_b128 {wreg(f)}, v61 offset:{f*1024}")
        else:
            e(f"  ds_read_b128 {wreg(f)}, v62 offset:{(f-36)*1024}")
    e("  s_waitcnt lgkmcnt(0)")
    e("  s_barrier")
    stamp()
    e("  s_add_u32 s38, s32, 73728")
    for k in range(3):
        nexttile()
    e("  s_mov_b32 s39, 0                 ; k")
    e("  s_mov_b32 s41, s32")
    e("  s_mov_b32 s42, s31")
    e("  s_mov_b32 s43, 0                 ; slot%3")
    stamp()
    def acc(t): return AC + 4*t
    pairs = [(8,9),(10,11),(0,1),(2,3),(4,5),(6,7)]
    def pk_reg(r, p):
        return PK + 6*r + p
    def epi(pair):
        t0, t1 = pair
        ins = []
        for t in (t0, t1):
            for r in range(4):
                a = acc(t)+r
                ins.append(f"  v_cvt_pk_bf16_f32 v{a}, 0, v{a}")
        for t in (t0, t1):
            for r in range(4):
                a = acc(t)+r
                ins.append(f"  v_add_f32 v{a}, v{a}, v{13+t}")
        for r in range(4):
            ins.append(f"  v_cvt_pk_bf16_f32 v{pk_reg(r, t0//2)}, v{acc(t0)+r}, v{acc(t1)+r}")
        return ins
    def st2(r):
        off = f" offset:{384*r}" if r else ""
        return f"  buffer_store_dwordx2 v[{pk_reg(r,4)}:{pk_reg(r,5)}], v12, s[24:27], s42 offen{off} {ST_FLAGS}"
    def st4(r):
        off = f" offset:{384*r}" if r else ""
        return f"  buffer_store_dwordx4 v[{pk_reg(r,0)}:{pk_reg(r,3)}], v11, s[24:27], s42 offen{off} {ST_FLAGS}"
    e("L_loop:")
    pos = [0]
    lastw = {}
    queue = []
    def emit(x, w=1):
        e(x); pos[0] += w
    def ready(item):
        t = item[1]
        return t is None or (pos[0] - lastw[t]) > 8
    def drain(n):
        c = 0
        while queue and c < n and ready(queue[0]):
            emit(queue.pop(0)[0]); c += 1
    def epi_q(pair):
        t0, t1 = pair
        q = []
        for t in (t0, t1):
            for r in range(4):
                a_ = acc(t)+r
                q.append((f"  v_cvt_pk_bf16_f32 v{a_}, 0, v{a_}", t))
        for t in (t0, t1):
            for r in range(4):
                a_ = acc(t)+r
                q.append((f"  v_add_f32 v{a_}, v{a_}, v{13+t}", None))
        for r in range(4):
            q.append((f"  v_cvt_pk_bf16_f32 v{pk_reg(r, t0//2)}, v{acc(t0)+r}, v{acc(t1)+r}", None))
        return q
    for pi, pair in enumerate(pairs):
        for s in range(6):
            if pi == 0:
                emit(f"  s_waitcnt lgkmcnt({5-s})")
            for t in pair:
                c = "0" if s == 0 else f"v[{acc(t)}:{acc(t)+3}]"
                lastw[t] = pos[0]
                emit(f"  v_mfma_f32_16x16x32_bf16 v[{acc(t)}:{acc(t)+3}], v[{XA+4*s}:{XA+4*s+3}], {wreg(s*12+t)}, {c}")
                drain(VPG)
        queue += epi_q(pair)
        if pi == 1:
            queue += [(st2(r), None) for r in range(4)]
    while queue:
        if not ready(queue[0]):
            need = 9 - (pos[0] - lastw[queue[0][1]])
            emit(f"  s_nop {need-1}", need)
        emit(queue.pop(0)[0])
    for r in range(4):
        e(st4(r))
    e(f"  s_add_u32 s42, s42, {TSTEP}")
    e("  s_add_u32 s39, s39, 1")
    e("  s_cmp_eq_u32 s39, 9")
    e("  s_cbranch_scc1 L_done")
    e("  s_waitcnt vmcnt(48)")
    e("  s_cmp_ge_u32 s39, 3")
    e("  s_cbranch_scc1 L_w")
    e("  s_waitcnt vmcnt(46)")
    e("  s_cmp_eq_u32 s39, 2")
    e("  s_cbranch_scc1 L_w")
    e("  s_waitcnt vmcnt(38)")
    e("L_w:")
    if STAMPS:
        for kk in (1, 3, 6):
            e(f"  s_cmp_lg_u32 s39, {kk}")
            e(f"  s_cbranch_scc1 L_st{kk}")
            stamp()
            e(f"  s_waitcnt lgkmcnt(0)")
            e(f"L_st{kk}:")
    e("  v_add_u32 v9, s41, v7")
    e("  v_add_u32 v10, s41, v8")
    for s in range(6):
        a = "v9" if s % 2 == 0 else "v10"
        e(f"  ds_read_b128 v[{XA+4*s}:{XA+4*s+3}], {a} offset:{128*(s//2)}")
    e("  s_cmp_ge_u32 s39, 3")
    e("  s_cbranch_scc1 L_noload")
    e("  s_waitcnt lgkmcnt(0)")
    dma_tile("s37", "s41")
    e(f"  s_add_u32 s37, s37, {TSTEP}")
    e("L_noload:")
    e("  s_add_u32 s41, s41, 6144")
    e("  s_add_u32 s43, s43, 1")
    e("  s_cmp_lg_u32 s43, 3")
    e("  s_cbranch_scc1 L_loop")
    e("  s_mov_b32 s43, 0")
    e("  s_add_u32 s44, s32, 73728")
    e("  s_cmp_eq_u32 s39, 3")
    e("  s_cselect_b32 s41, s44, s32")
    e("  s_branch L_loop")
    e("L_done:")
    if STAMPS:
        stamp()
        e("  s_waitcnt vmcnt(0)")
        stamp()
        e("  s_memrealtime s[58:59]")
        e("  s_waitcnt lgkmcnt(0)")
        e("  s_mov_b32 s48, s46")
        e("  s_and_b32 s49, s47, 0xffff")
        e("  s_mov_b32 s51, 0x00020000")
        if STAMPS == 1:
            e("  s_mov_b32 s50, 65536")
            e("  s_lshl_b32 s53, s30, 6")
            e("  v_mov_b32 v1, s53")
            e("  v_mov_b32 v2, s56")
            e("  v_mov_b32 v3, s58")
            e("  s_mov_b64 exec, 1")
            e("  buffer_store_dword v2, v1, s[48:51], 0 offen offset:56")
            e("  buffer_store_dword v3, v1, s[48:51], 0 offen offset:60")
            for i in range(1, nst[0]):
                e(f"  s_sub_u32 s52, s{60+2*i}, s60")
                e("  v_mov_b32 v2, s52")
                e(f"  buffer_store_dword v2, v1, s[48:51], 0 offen offset:{4*(i-1)}")
        else:
            e("  s_mov_b32 s50, 64")
            e("  s_mov_b32 s52, 0x00D9BA43")
            e("  s_mul_hi_u32 s53, s30, s52")
            e("  s_mul_i32 s52, s53, 301")
            e("  s_cmp_lg_u32 s52, s30")
            e("  s_cbranch_scc1 L_end")
            e("  s_lshl_b32 s53, s53, 4")
            e("  v_mov_b32 v1, s53")
            e("  v_mov_b32 v2, s56")
            e("  v_mov_b32 v3, s58")
            e("  s_mov_b64 exec, 1")
            e("  buffer_store_dword v2, v1, s[48:51], 0 offen")
            e("  buffer_store_dword v3, v1, s[48:51], 0 offen offset:4")
            for j, i in enumerate((6, nst[0]-1)):
                e(f"  s_sub_u32 s52, s{60+2*i}, s60")
                e("  v_mov_b32 v2, s52")
                e(f"  buffer_store_dword v2, v1, s[48:51], 0 offen offset:{8+4*j}")
    e("L_end:")
    e("  s_endpgm")
    e('.section .rodata,"a"')
    e(".p2align 6")
    e(f".amdhsa_kernel {NAME}_kernel")
    e("  .amdhsa_next_free_vgpr 512")
    e("  .amdhsa_next_free_sgpr 96")
    e("  .amdhsa_accum_offset 256")
    e("  .amdhsa_group_segment_fixed_size 0")
    e("  .amdhsa_kernarg_size 48")
    e("  .amdhsa_user_sgpr_count 2")
    e("  .amdhsa_user_sgpr_kernarg_segment_ptr 1")
    e("  .amdhsa_system_sgpr_workgroup_id_x 1")
    e("  .amdhsa_float_denorm_mode_32 3")
    e("  .amdhsa_float_denorm_mode_16_64 3")
    e(".end_amdhsa_kernel")
    return "\n".join(o) + "\n"

if __name__ == "__main__":
    out = sys.argv[1]
    opts = {}
    for a in sys.argv[2:]:
        k, v = a.split("=", 1)
        try: v = int(v)
        except ValueError: v = v.replace("+", " ")
        opts[k] = v
    open(out, "w").write(gen(opts))
```

```python
import sys
NAME = "standalone__standard_2d_1d_3d_conv__vision"

def gen(opts):
    LD_FLAGS = opts.get("ldflags", "nt")
    ST_FLAGS = opts.get("stflags", "")
    INTERLEAVE = opts.get("interleave", 1)
    STAMPS = opts.get("stamps", 0)
    o = []
    def e(s=""):
        o.append(s)
    nst = [0]
    def stamp(level=1):
        if STAMPS and (level == 1 or level == STAMPS):
            i = nst[0]; nst[0] += 1
            e(f"  s_memtime s[{60+2*i}:{61+2*i}]")
    XB = 56623104
    R = 122880
    e("; @launch grid=(256,1,1) block=(256,1,1) lds=163840")
    e('.amdgcn_target "amdgcn-amd-amdhsa--gfx950"')
    e(".text")
    e(f".globl {NAME}_kernel")
    e(".p2align 8")
    e(f".type {NAME}_kernel,@function")
    e(f"{NAME}_kernel:")
    e("  s_cmp_ge_u32 s2, 256")
    e("  s_cbranch_scc1 L_end")
    e("  s_load_dwordx8 s[4:11], s[0:1], 0")
    if STAMPS:
        e(f"  s_load_dwordx2 s[46:47], s[0:1], 40")
        e("  s_memrealtime s[56:57]")
    stamp()
    XA = 16
    AC = 40
    PK = 88
    WV = 112
    BI = 144
    LB = 160
    T = 144
    OB = 40
    RB = 88
    j, q, tA, tB, wo4, wo2, bo4, bo2, l16, t0, t1, t2, t3, wr0, wr1 = [f"v{T+i}" for i in range(15)]
    e("  v_lshrrev_b32 v1, 6, v0")
    e("  v_and_b32 v0, 63, v0            ; lane")
    e("  v_readfirstlane_b32 s28, v1")
    e("  s_mov_b32 s29, 0xAAAAAAAB")
    for i in range(6):
        r = 1 + i
        e(f"  v_add_u32 {t0}, {64*i}, v0")
        e(f"  v_mul_hi_u32 {t1}, {t0}, s29")
        e(f"  v_lshrrev_b32 {t1}, 4, {t1}        ; m = u/24")
        e(f"  v_mul_u32_u24 {t2}, 24, {t1}")
        e(f"  v_sub_u32 {t3}, {t0}, {t2}          ; c'")
        e(f"  v_bfe_u32 {t1}, {t1}, 1, 3         ; f(m)")
        e(f"  v_xor_b32 {t3}, {t3}, {t1}")
        e(f"  v_add_u32 {t3}, {t3}, {t2}")
        imm = 1024*i if i < 4 else 1024*(i-4)
        e(f"  v_lshlrev_b32 {t3}, 4, {t3}")
        e(f"  v_subrev_u32 v{r}, {imm}, {t3}")
    e(f"  v_and_b32 {j}, 15, v0")
    e(f"  v_lshrrev_b32 {q}, 4, v0")
    e(f"  v_mul_u32_u24 {tB}, 3072, {q}")
    e(f"  v_lshl_add_u32 {wo4}, {j}, 4, {tB}")
    e(f"  v_lshl_add_u32 {wo2}, {j}, 3, {tB}")
    e(f"  v_add_u32 {wo2}, 256, {wo2}")
    e(f"  v_lshlrev_b32 {bo4}, 4, {j}")
    e(f"  v_lshlrev_b32 {bo2}, 3, {j}")
    e("  s_lshl_b32 s30, s2, 2")
    e("  s_add_u32 s30, s30, s28")
    if INTERLEAVE:
        e("  s_mul_i32 s31, s30, 6144")
        TSTEP = 1024*6144
    else:
        e("  s_mul_i32 s31, s30, 55296")
        TSTEP = 6144
    e("  s_mul_i32 s32, s28, 30720")
    e("  s_mul_i32 s44, s28, 6144")
    e(f"  s_add_u32 s44, s44, {R}")
    e("  s_mov_b32 s33, 0x05040100")
    e("  s_mov_b32 s34, 0x07060302")
    e("  s_mul_i32 s35, s28, 24576")
    e("  s_add_u32 s36, s35, 12288")
    e(f"  s_mov_b32 s14, {XB}")
    e("  s_mov_b32 s15, 0x00020000")
    e("  s_mov_b32 s18, 73728")
    e("  s_mov_b32 s19, 0x00020000")
    e("  s_mov_b32 s22, 384")
    e("  s_mov_b32 s23, 0x00020000")
    e(f"  s_mov_b32 s26, {XB}")
    e("  s_mov_b32 s27, 0x00020000")
    e("  s_mov_b32 s37, s31")
    e("  s_mov_b32 s38, s32")
    e("  s_waitcnt lgkmcnt(0)")
    stamp()
    e("  s_mov_b32 s12, s4")
    e("  s_and_b32 s13, s5, 0xffff")
    e("  s_mov_b32 s16, s6")
    e("  s_and_b32 s17, s7, 0xffff")
    e("  s_mov_b32 s20, s8")
    e("  s_and_b32 s21, s9, 0xffff")
    e("  s_mov_b32 s24, s10")
    e("  s_and_b32 s25, s11, 0xffff")

    def dma_instrs(s_goff, s_lds):
        g = []
        for i in range(6):
            pre = []
            if i == 0:
                pre = [f"  s_mov_b32 m0, {s_lds}", f"  s_add_u32 s40, {s_lds}, 4096"]
            if i == 4:
                pre = ["  s_mov_b32 m0, s40", "  s_nop 0"]
            off = 1024*(i if i < 4 else i-4)
            offs = f" offset:{off}" if off else ""
            g.append(pre + [f"  buffer_load_dwordx4 v{1+i}, s[12:15], {s_goff} offen{offs} {LD_FLAGS} lds"])
        return g
    def nexttile_groups():
        g = dma_instrs("s37", "s38")
        g[-1] = g[-1] + [f"  s_add_u32 s37, s37, {TSTEP}", "  s_add_u32 s38, s38, 6144"]
        return g
    def nexttile():
        for grp in nexttile_groups():
            for x in grp: e(x)
    def wloads(h):
        for kk in range(8):
            b = LB + h*48 + kk*4
            e(f"  buffer_load_dwordx4 v[{b}:{b+3}], {wo4}, s[16:19], s{35+h} offen offset:{kk*384}")
        for kk in range(8):
            b = LB + h*48 + 32 + kk*2
            e(f"  buffer_load_dwordx2 v[{b}:{b+1}], {wo2}, s[16:19], s{35+h} offen offset:{kk*384}")
    def perm(h, t):
        ob = OB + t*4
        for ee in range(4):
            if t < 8:
                d = t//2
                r0 = LB + h*48 + (2*ee)*4 + d
                r1 = LB + h*48 + (2*ee+1)*4 + d
            else:
                d = (t-8)//2
                r0 = LB + h*48 + 32 + (2*ee)*2 + d
                r1 = LB + h*48 + 32 + (2*ee+1)*2 + d
            sel = "s33" if t % 2 == 0 else "s34"
            e(f"  v_perm_b32 v{ob+ee}, v{r1}, v{r0}, {sel}")
    def wwrite(t):
        ob = OB + t*4
        e(f"  ds_write_b128 {wr0}, v[{ob}:{ob+3}] offset:{t*1024}")
    def wreg(f):
        if f < 64:
            return f"a[{4*f}:{4*f+3}]"
        b = WV + (f-64)*4
        return f"v[{b}:{b+3}]"
    def wreads(h):
        for w in range(3):
            for t in range(12):
                f = (2*w+h)*12 + t
                e(f"  ds_read_b128 {wreg(f)}, v13 offset:{(w*12+t)*1024}")
    def misc_addr():
        e(f"  v_mul_u32_u24 {tA}, 384, {j}")
        e(f"  v_bfe_u32 {t1}, {j}, 1, 3")
        e(f"  v_xor_b32 {t1}, {t1}, {q}")
        e(f"  v_lshlrev_b32 {t1}, 4, {t1}")
        e(f"  v_add_u32 v7, {tA}, {t1}")
        e(f"  v_xor_b32 {t1}, 64, {t1}")
        e(f"  v_add_u32 v8, {tA}, {t1}")
        e(f"  v_mul_u32_u24 {tB}, 1536, {q}")
        e(f"  v_lshl_add_u32 v11, {j}, 4, {tB}")
        e(f"  v_lshl_add_u32 v12, {j}, 3, {tB}")
        e("  v_add_u32 v12, 256, v12")
        e(f"  v_lshlrev_b32 {l16}, 4, v0         ; lane*16")
        e(f"  v_add_u32 v13, {R}, {l16}")
        e("  s_mul_i32 s35, s28, 12288")
        e(f"  v_add_u32 {wr0}, s35, v13")

    nexttile()
    e(f"  buffer_load_dwordx4 v[{RB}:{RB+3}], {bo4}, s[20:23], 0 offen")
    e(f"  buffer_load_dwordx2 v[{RB+4}:{RB+5}], {bo2}, s[20:23], 0 offen offset:256")
    e("  s_cmp_eq_u32 s28, 3")
    e("  s_cbranch_scc1 L_w3")
    wloads(0)
    nexttile()
    wloads(1)
    stamp(3)
    misc_addr()
    e("  s_waitcnt vmcnt(22)")
    stamp(3)
    nexttile()
    for t in range(12):
        perm(0, t)
        wwrite(t)
    stamp(3)
    e("  s_waitcnt lgkmcnt(0)")
    e("  s_barrier                        ; A")
    wreads(0)
    e("  s_waitcnt vmcnt(6)")
    stamp(3)
    nexttile()
    for t in range(12):
        perm(1, t)
    e("  s_waitcnt lgkmcnt(0)")
    e("  s_barrier                        ; B")
    for t in range(12):
        wwrite(t)
    e("  s_branch L_join")
    e("L_w3:")
    nexttile()
    if STAMPS == 3:
        for i in (2,3,4,5):
            e(f"  s_memtime s[{60+2*i}:{61+2*i}]")
    misc_addr()
    e("  s_waitcnt vmcnt(6)")
    nexttile()
    e("  s_barrier                        ; A")
    wreads(0)
    e("  s_waitcnt vmcnt(6)")
    nexttile()
    e("  s_waitcnt lgkmcnt(0)")
    e("  s_barrier                        ; B")
    e("L_join:")
    e("  s_waitcnt lgkmcnt(0)")
    e("  s_barrier                        ; C")
    stamp()
    wreads(1)
    e("  v_add_u32 v9, s32, v7")
    e("  v_add_u32 v10, s32, v8")
    for s in range(6):
        a = "v9" if s % 2 == 0 else "v10"
        e(f"  ds_read_b128 v[{XA+4*s}:{XA+4*s+3}], {a} offset:{128*(s//2)}")
    for t in range(12):
        src = RB + t//2
        for r in range(4):
            if t % 2 == 0:
                e(f"  v_lshlrev_b32 v{BI+4*t+r}, 16, v{src}")
            else:
                e(f"  v_and_b32 v{BI+4*t+r}, 0xffff0000, v{src}")
    nexttile()
    e("  s_mov_b32 s38, s44               ; T5 -> slot 5")
    e("  s_mov_b32 s39, 0                 ; k")
    e("  s_add_u32 s41, s32, 6144")
    e("  s_mov_b32 s42, s31")
    e("  s_mov_b32 s45, 0x10000000")
    e("  s_mov_b32 s54, 0x3c              ; k in {2,3,4,5}")
    e("  s_mov_b32 s55, 0x42              ; k in {1,6}")
    e("  s_waitcnt lgkmcnt(0)")
    if opts.get("noload"): e("  s_waitcnt vmcnt(0)")
    e("  s_barrier                        ; D")
    stamp()
    def acc(t): return AC + 4*t
    pairs = [(0,1),(2,3),(4,5),(6,7),(8,9),(10,11)]
    def pk_reg(r, p):
        return PK + 6*r + p
    def st2(r, so):
        off = f" offset:{384*r}" if r else ""
        if opts.get("nost2"): return "  s_nop 0 ; store"
        return f"  buffer_store_dwordx2 v[{pk_reg(r,4)}:{pk_reg(r,5)}], v12, s[24:27], {so} offen{off} {ST_FLAGS}"
    def st4(r, so):
        off = f" offset:{384*r}" if r else ""
        if opts.get("nost4"): return "  s_nop 0 ; store"
        return f"  buffer_store_dwordx4 v[{pk_reg(r,0)}:{pk_reg(r,3)}], v11, s[24:27], {so} offen{off} {ST_FLAGS}"
    def cvt(pair):
        t0_, t1_ = pair
        return [(f"  v_cvt_pk_bf16_f32 v{pk_reg(r, t0_//2)}, v{acc(t0_)+r}, v{acc(t1_)+r}", t1_) for r in range(4)]
    e("L_loop:")
    pos = [0]
    lastw = {10: -3, 11: -2}
    queue = cvt(pairs[5]) + [(st2(r, "s45"), None) for r in range(4)]
    def emit(x, w=1):
        e(x); pos[0] += w
    def ready(item):
        t = item[1]
        return t is None or (pos[0] - lastw[t]) > 8
    def drain(n):
        c = 0
        while queue and c < n and ready(queue[0]):
            emit(queue.pop(0)[0]); c += 1
    for pi, pair in enumerate(pairs):
        if pi == 1:
            assert not any('store' in x[0] for x in queue)
            e(f"  s_cmp_ge_u32 s39, {0 if opts.get('noload') else 4}")
            e("  s_cbranch_scc1 L_noload")
            nexttile()
            e("  s_cmp_eq_u32 s39, 0")
            e("  s_cselect_b32 s38, s32, s38")
            e("L_noload:")
            pos[0] += 2
        if pi == 5:
            assert not any('store' in x[0] for x in queue)
            if opts.get("nost2") or opts.get("nost4"): e("  s_waitcnt vmcnt(0)")
            e("  s_waitcnt vmcnt(48)")
            e("  s_bitcmp1_b32 s54, s39")
            e("  s_cbranch_scc1 L_w")
            e("  s_waitcnt vmcnt(40)")
            e("  s_bitcmp1_b32 s55, s39")
            e("  s_cbranch_scc1 L_w")
            e("  s_waitcnt vmcnt(32)")
            e("L_w:")
            e("  v_add_u32 v9, s41, v7")
            e("  v_add_u32 v10, s41, v8")
            pos[0] += 5
        for s in range(6):
            if pi == 0:
                emit(f"  s_waitcnt lgkmcnt({5-s})")
            for t in pair:
                c = f"v[{BI+4*t}:{BI+4*t+3}]" if s == 0 else f"v[{acc(t)}:{acc(t)+3}]"
                lastw[t] = pos[0]
                emit(f"  v_mfma_f32_16x16x32_bf16 v[{acc(t)}:{acc(t)+3}], v[{XA+4*s}:{XA+4*s+3}], {wreg(s*12+t)}, {c}")
                drain(2)
            if pi == 5:
                a = "v9" if s % 2 == 0 else "v10"
                emit(f"  ds_read_b128 v[{XA+4*s}:{XA+4*s+3}], {a} offset:{128*(s//2)}")
        if pi < 5:
            queue += cvt(pair)
        if pi == 3:
            queue += [(st4(r, "s42"), None) for r in range(4)]
    assert not queue, queue
    e("  s_mov_b32 s45, s42")
    e(f"  s_add_u32 s42, s42, {TSTEP}")
    e("  s_add_u32 s39, s39, 1")
    if STAMPS == 1:
        for kk in (1, 2, 3, 4, 5, 6):
            e(f"  s_cmp_lg_u32 s39, {kk}")
            e(f"  s_cbranch_scc1 L_st{kk}")
            stamp()
            e(f"  s_waitcnt lgkmcnt(0)")
            e(f"L_st{kk}:")
    e("  s_add_u32 s41, s41, 6144")
    e("  s_cmp_eq_u32 s39, 4")
    e("  s_cselect_b32 s41, s44, s41")
    e("  s_cmp_eq_u32 s39, 5")
    e("  s_cselect_b32 s41, s32, s41")
    e("  s_cmp_lg_u32 s39, 9")
    e("  s_cbranch_scc1 L_loop")
    e("  s_nop 3")
    for x in cvt(pairs[5]): e(x[0])
    for r in range(4): e(st2(r, "s45"))
    if STAMPS:
        stamp()
        e("  s_waitcnt vmcnt(0)")
        stamp()
        e("  s_memrealtime s[58:59]")
        e("  s_waitcnt lgkmcnt(0)")
        e("  s_mov_b32 s48, s46")
        e("  s_and_b32 s49, s47, 0xffff")
        e("  s_mov_b32 s51, 0x00020000")
        e("  s_mov_b32 s50, 65536")
        e("  s_lshl_b32 s53, s30, 6")
        e("  v_mov_b32 v1, s53")
        e("  v_mov_b32 v2, s56")
        e("  v_mov_b32 v3, s58")
        e("  s_mov_b64 exec, 1")
        e("  buffer_store_dword v2, v1, s[48:51], 0 offen offset:56")
        e("  buffer_store_dword v3, v1, s[48:51], 0 offen offset:60")
        for i in range(1, nst[0]):
            e(f"  s_sub_u32 s52, s{60+2*i}, s60")
            e("  v_mov_b32 v2, s52")
            e(f"  buffer_store_dword v2, v1, s[48:51], 0 offen offset:{4*(i-1)}")
    e("L_end:")
    e("  s_endpgm")
    e('.section .rodata,"a"')
    e(".p2align 6")
    e(f".amdhsa_kernel {NAME}_kernel")
    e("  .amdhsa_next_free_vgpr 512")
    e("  .amdhsa_next_free_sgpr 96")
    e("  .amdhsa_accum_offset 256")
    e("  .amdhsa_group_segment_fixed_size 0")
    e("  .amdhsa_kernarg_size 48")
    e("  .amdhsa_user_sgpr_count 2")
    e("  .amdhsa_user_sgpr_kernarg_segment_ptr 1")
    e("  .amdhsa_system_sgpr_workgroup_id_x 1")
    e("  .amdhsa_float_denorm_mode_32 3")
    e("  .amdhsa_float_denorm_mode_16_64 3")
    e(".end_amdhsa_kernel")
    return "\n".join(o) + "\n"

if __name__ == "__main__":
    out = sys.argv[1]
    opts = {}
    for a in sys.argv[2:]:
        k, v = a.split("=", 1)
        try: v = int(v)
        except ValueError: v = v.replace("+", " ")
        opts[k] = v
    open(out, "w").write(gen(opts))
```

```python
import sys, re, subprocess, os
NAME = "standalone__standard_2d_1d_3d_conv__vision_kernel"
def sizes(path):
    co = "pads_tmp.co"
    subprocess.check_call(["python3", "mkco.py", path, co], stdout=subprocess.DEVNULL)
    out = subprocess.check_output(["llvm-objdump", "-d", "--mcpu=gfx950", co], text=True)
    res = []; on = False
    for l in out.splitlines():
        if f"<{NAME}>:" in l: on = True; continue
        if not on: continue
        m = re.search(r"// ([0-9A-F]{12}): ((?:[0-9A-F]{8} ?)+)", l)
        if m:
            res.append((int(m.group(1), 16), 4*len(m.group(2).split()), l.strip().split()[0]))
            if l.strip().startswith("s_endpgm"): break
    return res
def isinst(l):
    t = l.split(";")[0].strip()
    return bool(t) and not t.endswith(":") and not t.startswith(".")
def main(src, dst, stride, first, mode):
    lines = open(src).read().split("\n")
    k0 = lines.index(f"{NAME}:")
    j = next(i for i, l in enumerate(lines) if "v_readfirstlane_b32 s28" in l)
    sh = stride.bit_length() - 1
    if mode == 0:
        NT = 32
        sel = ["  s_cmp_lt_u32 s2, 128", "  s_cbranch_scc1 L_tret", "  s_cmp_lt_u32 s28, 2", "  s_cbranch_scc1 L_tret",
               "  s_bfe_u32 s70, s2, 0x40003", "  s_lshl_b32 s70, s70, 1", "  s_and_b32 s71, s28, 1", "  s_or_b32 s70, s70, s71"]
    elif mode == 1:
        NT = 64
        sel = ["  s_cmp_lt_u32 s2, 128", "  s_cbranch_scc1 L_tret",
               "  s_bfe_u32 s70, s2, 0x40003", "  s_lshl_b32 s70, s70, 2", "  s_or_b32 s70, s70, s28"]
    elif mode == 2:
        NT = 16
        sel = ["  s_cmp_lt_u32 s2, 128", "  s_cbranch_scc1 L_tret", "  s_cmp_lt_u32 s28, 3", "  s_cbranch_scc1 L_tret",
               "  s_bfe_u32 s70, s2, 0x40003"]
    jump = sel + ["  s_cmp_ge_u32 s70, NPADS", "  s_cbranch_scc1 L_tret",
           f"  s_lshl_b32 s70, s70, {sh}",
           "  s_getpc_b64 s[68:69]", "L_pc:",
           f"  s_add_u32 s70, s70, {NAME}+{first*stride}-L_pc",
           "  s_add_u32 s68, s68, s70", "  s_addc_u32 s69, s69, 0",
           "  s_mov_b64 exec, 0", "  s_setpc_b64 s[68:69]",
           "L_tr2:", "  s_mov_b64 exec, -1", "L_tret:"]
    lines[j+1:j+1] = jump
    tmp = "pads_tmp.s"
    open(tmp, "w").write("\n".join(lines).replace("NPADS", "1"))
    sz = sizes(tmp)
    out = lines[:k0+1]; off = 0; ii = 0; npad = 0; done = False
    for l in lines[k0+1:]:
        if not done and isinst(l):
            s = sz[ii][1]
            assert sz[ii][2].split("_e")[0] in l or l.split()[0].startswith(sz[ii][2].replace("_e32","").replace("_e64","")), (sz[ii], l)
            B = (first + npad)*stride
            if off <= B < off + s:
                for _ in range((B - off)//4): out.append("  s_nop 0")
                out.append(f"L_pad{npad}:")
                out.append(f"  s_cbranch_execz PADNEXT{npad}_")
                off = B + 4; npad += 1
            off += s; ii += 1
            if l.strip().startswith("s_endpgm"): done = True
        out.append(l)
    txt = "\n".join(out).replace("NPADS", str(min(npad, NT)))
    for p in range(npad):
        txt = txt.replace(f"PADNEXT{p}_", f"L_pad{p+NT}" if p + NT < npad else "L_tr2")
    open(dst, "w").write(txt)
    sz2 = sizes(dst); base = sz2[0][0]; m = {a - base: n for a, _, n in sz2}
    assert base % 256 == 0
    for p in range(npad): assert m.get((first + p)*stride) == "s_cbranch_execz", (p, m.get((first+p)*stride))
    print(dst, "pads", npad, "size", sz2[-1][0] - base)
main(sys.argv[1], sys.argv[2], int(sys.argv[3]), int(sys.argv[4]), int(sys.argv[5]))
```

```python
import sys
src = open("r4.s").read()
src = src.replace("grid=(256,1,1)", "grid=(257,1,1)")
src = src.replace("  s_cmp_ge_u32 s2, 256\n  s_cbranch_scc1 L_end\n", "  s_cmp_ge_u32 s2, 256\n  s_cbranch_scc1 L_diag\n", 1)
o = []; e = o.append
e("L_end:"); e("  s_endpgm")
e("L_diag:")
e("  s_cmp_lg_u32 s2, 256"); e("  s_cbranch_scc1 L_end")
e("  v_lshrrev_b32 v1, 6, v0"); e("  v_readfirstlane_b32 s28, v1")
e("  s_cmp_lg_u32 s28, 0"); e("  s_cbranch_scc1 L_end")
e("  s_load_dwordx8 s[4:11], s[0:1], 0")
e("  s_load_dwordx2 s[46:47], s[0:1], 32")
e("  s_getreg_b32 s79, hwreg(HW_REG_XCC_ID)")
e("  s_and_b32 s79, s79, 15")
e("  s_waitcnt lgkmcnt(0)")
e("  s_mov_b32 s12, s4"); e("  s_and_b32 s13, s5, 0xffff"); e("  s_mov_b32 s14, 56623104"); e("  s_mov_b32 s15, 0x00020000")
e("  s_mov_b32 s24, s10"); e("  s_and_b32 s25, s11, 0xffff"); e("  s_mov_b32 s26, 56623104"); e("  s_mov_b32 s27, 0x00020000")
e("  s_mov_b32 s48, s46"); e("  s_and_b32 s49, s47, 0xffff"); e("  s_mov_b32 s50, 256"); e("  s_mov_b32 s51, 0x00020000")
e("  s_mov_b32 s60, 40")
e("L_d0:"); e("  s_sleep 16"); e("  s_sub_u32 s60, s60, 1"); e("  s_cmp_lg_u32 s60, 0"); e("  s_cbranch_scc1 L_d0")
e("  s_mov_b64 exec, 1")
e("  v_mov_b32 v1, 0")
e("  v_mov_b32 v2, 8192")
passes = [("s[12:15]", 0x10100, 70), ("s[24:27]", 0x10100, 71), ("s[12:15]", 0x84b00, 72), ("s[24:27]", 0x84b00, 73), ("s[12:15]", 0x150680, 74), ("s[24:27]", 0x150680, 75)]
e("  s_mov_b32 s80, 0")
e("  s_mov_b32 s81, 0")
for pi, (srd, lo, mr) in enumerate(passes):
    e(f"  s_mov_b32 s{mr}, 0")
    e(f"  s_mov_b32 s61, {lo}")
    e("  s_mov_b32 s62, 0")
    e(f"L_p{pi}:")
    e(f"  buffer_load_dword v3, v1, {srd}, s61 offen sc0 sc1")
    e(f"  buffer_load_dword v4, v2, {srd}, s61 offen sc0 sc1")
    e("  s_waitcnt vmcnt(1)")
    e("  s_memtime s[64:65]")
    e("  s_waitcnt vmcnt(0)")
    e("  s_memtime s[66:67]")
    e("  s_waitcnt lgkmcnt(0)")
    e("  s_sub_u32 s63, s66, s64")
    if pi == 2:
        e("  s_lshr_b32 s68, s63, 2"); e("  s_min_u32 s68, s68, 255")
        e("  s_cmp_lt_u32 s62, 4"); e(f"  s_cbranch_scc0 L_q{pi}")
        e("  s_lshl_b32 s80, s80, 8"); e("  s_or_b32 s80, s80, s68")
        e(f"L_q{pi}:")
        e("  s_sub_u32 s69, s62, 4"); e("  s_cmp_lt_u32 s69, 4"); e(f"  s_cbranch_scc0 L_r{pi}")
        e("  s_lshl_b32 s81, s81, 8"); e("  s_or_b32 s81, s81, s68")
        e(f"L_r{pi}:")
    e("  s_cmp_gt_u32 s63, 110")
    e("  s_cselect_b32 s63, 1, 0")
    e("  s_lshl_b32 s63, s63, s62")
    e(f"  s_or_b32 s{mr}, s{mr}, s63")
    e("  s_add_u32 s61, s61, 0x200000")
    e("  s_add_u32 s62, s62, 1")
    e("  s_cmp_lt_u32 s62, 27")
    e(f"  s_cbranch_scc1 L_p{pi}")
vals = ["s79", "s70", "s71", "s72", "s73", "s74", "s75", "s80", "s81", "s4", "s5", "s10", "s11", "s6", "s8", "s46"]
for i, v in enumerate(vals):
    e(f"  v_mov_b32 v3, {v}")
    e(f"  buffer_store_dword v3, v1, s[48:51], 0 offen offset:{4*i}")
e("  s_endpgm")
src = src.replace("L_end:\n  s_endpgm\n", "\n".join(o) + "\n", 1)
open(sys.argv[1], "w").write(src)
```
